```python
import torch

def _softmax(x, axis=-1):
    return torch.softmax(x, dim=axis)
def _gelu(x):
    return torch.nn.functional.gelu(x, approximate="tanh")
def _silu(x):
    return torch.nn.functional.silu(x)
def _sigmoid(x):
    return torch.sigmoid(x)
def _layernorm(x, axis=-1, eps=1e-5):
    m = x.mean(dim=axis, keepdim=True)
    v = x.var(dim=axis, keepdim=True, unbiased=False)
    return (x - m) / torch.sqrt(v + eps)
def _scatter_add(tgt, idx, src, axis=0):
    return tgt.clone().index_add_(axis, idx, src)
def _segment_sum(src, seg, n):
    out = torch.zeros((n,) + src.shape[1:], dtype=src.dtype)
    return out.index_add_(0, seg, src)
def _pad(x, pw):
    flat = tuple(v for pair in reversed(pw) for v in pair)
    return torch.nn.functional.pad(x, flat)

kernel_name = 'gated_mix__ssm_conv_s4__ssm_conv_h3__prompt'

def setup_inputs():

    _w = (lambda a: (lambda t: t.to(torch.bfloat16) if t.is_floating_point() else t)(torch.as_tensor(a)))
    def _A_setup():
        B, L, D, N = 1, 2048, 448, 256
        A_re = -(lambda _x: torch.exp(torch.as_tensor(_x)))((lambda *s: torch.randn(*s, dtype=torch.bfloat16) * 6.4)(D, N))
        A_im = torch.pi * (lambda *s: torch.randn(*s, dtype=torch.bfloat16) * 0.05)(D, N)
        B_re = (lambda *s: torch.randn(*s, dtype=torch.bfloat16) * 0.1)(D, N)
        B_im = (lambda *s: torch.randn(*s, dtype=torch.bfloat16) * 0.1)(D, N)
        C_re = (lambda *s: torch.randn(*s, dtype=torch.bfloat16) * 0.1)(D, N)
        C_im = (lambda *s: torch.randn(*s, dtype=torch.bfloat16) * 0.1)(D, N)
        log_dt = (lambda *s: torch.randn(*s, dtype=torch.bfloat16) * 0.05)(D) * 0.5 - 4.0
        Dskip = (lambda *s: torch.randn(*s, dtype=torch.bfloat16) * 0.05)(D)
        return {
            "u": _w((lambda *s: torch.randn(*s, dtype=torch.bfloat16) * 0.05)(B, L, D)),
            "A_re": _w(A_re),
            "A_im": _w(A_im),
            "B_re": _w(B_re),
            "B_im": _w(B_im),
            "C_re": _w(C_re),
            "C_im": _w(C_im),
            "log_dt": _w(log_dt),
            "Dskip": _w(Dskip),
        }
    _A_in = _A_setup()

    def _B_setup():
        B, S, D = 1, 2048, 448
        ks = 4
        return {
            "q": _w((lambda *s: torch.randn(*s, dtype=torch.bfloat16) * 0.05)(B, S, D)),
            "k": _w((lambda *s: torch.randn(*s, dtype=torch.bfloat16) * 0.4)(B, S, D)),
            "v": _w((lambda *s: torch.randn(*s, dtype=torch.bfloat16) * 0.4)(B, S, D)),
            "shift_k": _w((lambda *s: torch.randn(*s, dtype=torch.bfloat16) * 0.4)(D, ks) * 0.5),
            "ssm_k": _w((lambda *s: torch.randn(*s, dtype=torch.bfloat16) * 0.4)(D, S) * (1.0 / S ** 0.5)),
            "ssm_D": _w((lambda *s: torch.randn(*s, dtype=torch.bfloat16) * 0.4)(D)),
        }
    _B_in = _B_setup()

    return {
        "A_u": _A_in["u"],
        "A_A_re": _A_in["A_re"],
        "A_A_im": _A_in["A_im"],
        "A_B_re": _A_in["B_re"],
        "A_B_im": _A_in["B_im"],
        "A_C_re": _A_in["C_re"],
        "A_C_im": _A_in["C_im"],
        "A_log_dt": _A_in["log_dt"],
        "A_Dskip": _A_in["Dskip"],
        "B_q": _B_in["q"],
        "B_k": _B_in["k"],
        "B_v": _B_in["v"],
        "B_shift_k": _B_in["shift_k"],
        "B_ssm_k": _B_in["ssm_k"],
        "B_ssm_D": _B_in["ssm_D"],
        "gate_w": _w((lambda *s: torch.randn(*s, dtype=torch.bfloat16) * 0.05)(448) * 16.0),
    }

def reference(A_u, A_A_re, A_A_im, A_B_re, A_B_im, A_C_re, A_C_im, A_log_dt, A_Dskip, B_q, B_k, B_v, B_shift_k, B_ssm_k, B_ssm_D, gate_w):
    def _A_ref(u, A_re, A_im, B_re, B_im, C_re, C_im, log_dt, Dskip):
        Bsz, L, D = u.shape
        dt = torch.exp(log_dt)[:, None]
        A = A_re + 1j * A_im
        Bc = B_re + 1j * B_im
        Cc = C_re + 1j * C_im
        logdA = dt * A
        dB = dt * Bc
        l = (lambda x, dt: x.to(dt))(torch.arange(L), A_re.dtype)
        P = torch.exp(logdA[:, :, None] * l[None, None, :])
        K = torch.einsum("dn,dnl,dn->dl", Cc, P, dB).real
        L2 = 2 * L
        Kp = _pad(K, ((0, 0), (0, L)))
        up = (lambda x, *d: x.permute(*d))(u, 0, 2, 1)
        up = _pad(up, ((0, 0), (0, 0), (0, L)))
        Kf = (lambda x, axes=(-2,-1): torch.fft.rfft2(x.float(), dim=axes))(Kp[:, None, :], axes=(-2, -1))
        Uf = (lambda x, axes=(-2,-1): torch.fft.rfft2(x.float(), dim=axes))(up[:, :, None, :], axes=(-2, -1))
        Yf = Uf * Kf[None, :, :, :]
        y = (lambda x, s, axes=(-2,-1): torch.fft.irfft2(x, s=s, dim=axes).to(torch.bfloat16))(Yf, (1, L2), axes=(-2, -1))[:, :, 0, :L]
        y = (lambda x, *d: x.permute(*d))(y, 0, 2, 1) + u * Dskip[None, None, :]
        return y

    def _B_ref(q, k, v, shift_k, ssm_k, ssm_D):
        B, S, D = q.shape
        ks = shift_k.shape[-1]
        k_pad = _pad(k, ((0, 0), (ks - 1, 0), (0, 0)))
        k_shift = torch.zeros_like(k)
        for t in range(ks):
            k_shift = k_shift + k_pad[:, t:t + S, :] * shift_k[:, ks - 1 - t][None, None, :]
        kv = k_shift * v
        L = 2 * S
        kv_pad = _pad(kv, ((0, 0), (0, S), (0, 0)))
        kf_pad = _pad(ssm_k, ((0, 0), (0, S)))
        kv_f = (lambda x, axes=(-2,-1): torch.fft.rfft2(x.float(), dim=axes))(kv_pad[:, None, :, :], axes=(1, 2))
        kf_f = (lambda x, axes=(-2,-1): torch.fft.rfft2(x.float(), dim=axes))(kf_pad[:, None, :], axes=(1, 2))
        kf_f = (lambda x, *d: x.permute(*d))(kf_f, 1, 2, 0)
        y_f = kv_f * kf_f[None, :, :, :]
        y = (lambda x, s, axes=(-2,-1): torch.fft.irfft2(x, s=s, dim=axes).to(torch.bfloat16))(y_f, (1, L), axes=(1, 2))[:, 0, :S, :]
        y = y + kv * ssm_D[None, None, :]
        return q * y

    x = A_u
    g = _sigmoid((x * gate_w).sum(-1, keepdims=True))
    a = _A_ref(x, A_A_re, A_A_im, A_B_re, A_B_im, A_C_re, A_C_im, A_log_dt, A_Dskip)
    b = _B_ref(x, B_k, B_v, B_shift_k, B_ssm_k, B_ssm_D)
    return g * a + (1 - g) * b
```

```python
import re, copy

TRANS = ("v_exp_", "v_log_", "v_rcp_", "v_rsq_", "v_sqrt_", "v_sin_", "v_cos_")
MOD_RE = re.compile(r"\b(op_sel|op_sel_hi|neg_lo|neg_hi|quad_perm):\[[^\]]*\]")


def expand(tok):
    tok = tok.strip().split(" ")[0] if tok.strip() else ""
    tok = tok.lstrip("-").strip("|")
    if tok.startswith("abs("):
        tok = tok[4:-1]
    m = re.fullmatch(r"([vsa])(\d+)", tok)
    if m:
        return [tok]
    m = re.fullmatch(r"([vsa])\[(\d+):(\d+)\]", tok)
    if m:
        return [f"{m.group(1)}{i}" for i in range(int(m.group(2)), int(m.group(3)) + 1)]
    if tok in ("vcc", "exec", "m0"):
        return [tok]
    if tok in ("vcc_lo", "vcc_hi"):
        return ["vcc"]
    if tok in ("exec_lo", "exec_hi"):
        return ["exec"]
    return []


def R(base, n=1, kind="v"):
    return f"{kind}{base}" if n == 1 else f"{kind}[{base}:{base + n - 1}]"


class Instr:
    def __init__(self, text):
        self.text = text
        op, _, rest = text.partition(" ")
        self.op = op
        rest = MOD_RE.sub("", rest)
        ops = [expand(t) for t in rest.split(",")] if rest.strip() else []
        self.ops = ops
        flat = lambda l: [r for o in l for r in o]
        self.defs, self.uses = [], []
        self.kind = "salu"
        if op.startswith("ds_"):
            self.kind = "ds"
            if op.startswith(("ds_read", "ds_bpermute", "ds_permute", "ds_swizzle")):
                self.defs, self.uses = ops[0], flat(ops[1:])
                if "d16" in op:
                    self.uses = self.uses + ops[0]
            else:
                self.uses = flat(ops)
        elif op.startswith(("global_", "buffer_")):
            self.kind = "vmem"
            if op.startswith(("buffer_wbl2", "buffer_inv")):
                pass
            elif "_load" in op or ("atomic" in op and " sc0" in text):
                self.defs, self.uses = ops[0], flat(ops[1:])
                if "d16" in op:
                    self.uses = self.uses + ops[0]
            else:
                self.uses = flat(ops)
        elif op.startswith("v_mfma"):
            self.kind = "mfma"
            self.defs, self.uses = ops[0], flat(ops[1:])
        elif op.startswith("v_"):
            self.kind = "valu"
            self.defs, self.uses = ops[0], flat(ops[1:])
            if op.startswith(("v_fmac", "v_pk_fmac", "v_dot2c", "v_writelane")) or "dpp" in op:
                self.uses = self.uses + ops[0]
            if op.startswith("v_permlane") or op.startswith("v_swap"):
                self.defs = flat(ops[:2])
                self.uses = flat(ops[:2])
        elif op.startswith(("s_load", "s_memtime", "s_memrealtime")):
            self.kind = "smem"
            self.defs, self.uses = ops[0], flat(ops[1:])
        elif op.startswith(("s_cmp", "s_bitcmp")):
            self.uses = flat(ops)
        elif op.startswith(("s_waitcnt", "s_barrier", "s_nop", "s_endpgm", "s_branch", "s_cbranch", "s_setprio", "s_sleep")):
            self.kind = "ctl"
        else:
            self.defs, self.uses = (ops[0] if ops else []), flat(ops[1:])
            if "saveexec" in op:
                self.defs = self.defs + ["exec"]
        self.trans = op.startswith(TRANS)
        self.dpp = "dpp" in op
        self.widestore = self.kind == "vmem" and not self.defs and re.search(r"x[34]\b", op) is not None


class State:
    def __init__(self):
        self.pos = 0
        self.lds = []
        self.vm = []
        self.smem = set()
        self.valu_w = {}
        self.trans_w = {}
        self.sgpr_w = {}
        self.mfma_w = {}
        self.mfma_c = {}
        self.store_d = {}


class Emitter:
    def __init__(self):
        self.lines = []
        self.st = State()
        self.count = {}

    def raw(self, text):
        self.lines.append(text)

    def comment(self, text):
        self.lines.append(f"    ; {text}")

    def label(self, name):
        self.lines.append(f"{name}:")

    def snapshot(self):
        return copy.deepcopy(self.st)

    def restore(self, st):
        self.st = copy.deepcopy(st)

    def _put(self, text, states=1):
        self.lines.append("    " + text)
        self.st.pos += states

    def nop(self, n):
        while n > 0:
            k = min(n, 16)
            self._put(f"s_nop {k - 1}", k)
            n -= k

    def wait(self, vm=None, lgkm=None):
        st = self.st
        parts = []
        if vm is not None:
            parts.append(f"vmcnt({min(vm, 63)})")
            st.vm = st.vm[len(st.vm) - vm:] if vm else []
        if lgkm is not None:
            parts.append(f"lgkmcnt({min(lgkm, 15)})")
            if lgkm == 0:
                st.smem = set()
            st.lds = st.lds[len(st.lds) - lgkm:] if lgkm else []
        self._put("s_waitcnt " + " ".join(parts))

    def settle(self):
        self.wait(vm=0, lgkm=0)
        self.nop(12)
        pos = self.st.pos
        self.st = State()
        self.st.pos = pos

    def __call__(self, text):
        for t in text.strip().split("\n"):
            t = t.strip()
            if t:
                self.emit(t)

    def emit(self, text):
        ins = Instr(text)
        st = self.st
        self.count[ins.kind] = self.count.get(ins.kind, 0) + 1
        if ins.op == "s_waitcnt":
            vm = re.search(r"vmcnt\((\d+)\)", text)
            lg = re.search(r"lgkmcnt\((\d+)\)", text)
            vm = int(vm.group(1)) if vm else None
            lg = int(lg.group(1)) if lg else None
            if vm is not None and vm > len(st.vm):
                vm_keep, st_vm = None, True
            self._put(text)
            if vm is not None and vm < len(st.vm):
                st.vm = st.vm[len(st.vm) - vm:] if vm else []
            if lg is not None:
                if lg == 0:
                    st.smem = set()
                if lg < len(st.lds):
                    st.lds = st.lds[len(st.lds) - lg:] if lg else []
            return
        if ins.op == "s_nop":
            self._put(text, int(text.split()[1]) + 1)
            return
        touched = set(ins.defs) | set(ins.uses)
        need_vm = need_lg = None
        for i, d in enumerate(st.vm):
            if d & touched:
                need_vm = len(st.vm) - i - 1
        for i, d in enumerate(st.lds):
            if d & touched:
                need_lg = len(st.lds) - i - 1
        if st.smem & touched or (need_lg is not None and st.smem):
            need_lg = 0
        if need_vm is not None or need_lg is not None:
            self.wait(need_vm, need_lg)

        need = 0

        def req(p, n):
            nonlocal need
            need = max(need, n - (st.pos - p - 1))

        uses, defs = set(ins.uses), set(ins.defs)
        if ins.kind == "mfma":
            for r in uses:
                if r in st.valu_w:
                    req(st.valu_w[r], 2)
            c = tuple(ins.ops[3])
            for r in set(ins.ops[1]) | set(ins.ops[2]):
                if r in st.mfma_w:
                    p, ps, _ = st.mfma_w[r]
                    req(p, 8 if ps == 4 else 12)
            for r in set(c) | defs:
                if r in st.mfma_w:
                    p, ps, d = st.mfma_w[r]
                    if not (d == c and d == tuple(ins.ops[0])):
                        req(p, 6 if ps == 4 else 10)
        if ins.kind in ("valu", "ds", "vmem"):
            for r in touched:
                if r in st.mfma_w:
                    p, ps, _ = st.mfma_w[r]
                    req(p, 8 if ps == 4 else 12)
        if ins.kind == "valu":
            for r in defs:
                if r in st.mfma_c:
                    p, ps = st.mfma_c[r]
                    req(p, 3 if ps == 4 else 7)
                if r in st.store_d:
                    req(st.store_d[r], 2)
            for r in uses:
                if r in st.trans_w and not ins.trans:
                    req(st.trans_w[r], 1)
                if r in st.valu_w:
                    if ins.dpp or ins.op.startswith("v_permlane"):
                        req(st.valu_w[r], 2)
                    if ins.op.startswith(("v_readlane", "v_readfirstlane")):
                        req(st.valu_w[r], 1)
                if r in st.sgpr_w:
                    req(st.sgpr_w[r], 4 if ins.op.startswith(("v_readlane", "v_writelane")) else 2)
        if ins.kind in ("ds", "vmem"):
            for r in uses:
                if r in st.trans_w:
                    req(st.trans_w[r], 1)
        if ins.kind == "vmem":
            for r in uses:
                if r in st.sgpr_w:
                    req(st.sgpr_w[r], 5)
        if ins.kind in ("salu", "smem"):
            for r in uses:
                if r in st.sgpr_w:
                    req(st.sgpr_w[r], 1)
        if need > 0:
            self.nop(need)

        p = st.pos
        self._put(text)
        if ins.kind == "ds":
            st.lds.append(set(ins.defs))
        elif ins.kind == "vmem":
            st.vm.append(set(ins.defs))
            if ins.widestore:
                for r in uses:
                    st.store_d[r] = p
        elif ins.kind == "smem":
            st.smem |= defs
        if ins.kind == "valu":
            for r in defs:
                if r[0] == "v" and r != "vcc":
                    st.valu_w[r] = p
                    st.mfma_w.pop(r, None)
                    if ins.trans:
                        st.trans_w[r] = p
                    else:
                        st.trans_w.pop(r, None)
                else:
                    st.sgpr_w[r] = p
        elif ins.kind == "mfma":
            ps = 4 if "16x16" in ins.op else 8
            for r in defs:
                st.mfma_w[r] = (p, ps, tuple(ins.ops[0]))
                st.valu_w.pop(r, None)
            for r in ins.ops[3]:
                st.mfma_c[r] = (p, ps)
        else:
            for r in defs:
                st.sgpr_w.pop(r, None)
                if ins.kind in ("ds", "vmem"):
                    st.valu_w.pop(r, None)
                    st.trans_w.pop(r, None)

    def text(self):
        return "\n".join(self.lines) + "\n"


class Regs:
    def __init__(self, lo, hi):
        self.free = [True] * hi
        for i in range(lo):
            self.free[i] = False
        self.hi = hi
        self.peak = lo

    def alloc(self, n=1, align=None):
        align = align or (2 if n >= 2 else 1)
        b = 0
        while b + n <= self.hi:
            if all(self.free[b:b + n]):
                for i in range(b, b + n):
                    self.free[i] = False
                self.peak = max(self.peak, b + n)
                return b
            b += align
        raise RuntimeError(f"out of registers for {n}")

    def release(self, b, n=1):
        for i in range(b, b + n):
            assert not self.free[i], i
            self.free[i] = True
```

```python
import sys
from asmlib import Emitter, Regs, R

NAME = "gated_mix__ssm_conv_s4__ssm_conv_h3__prompt"
ROWB, L, D = 896, 2048, 448
XBYTES = L * ROWB

WS_X = 0
WS_G = 2 * D * 4096
WS_FLAG = 4 << 20
WS_DBG = 8 << 20

KCOPY = 4160
KREG = 4 * KCOPY
LDS_K = 0
LDS_B = 4 * KREG
LDS_Y = LDS_B + 4 * 5120
LDS_TR = LDS_Y
LDS_PART = LDS_Y + 4 * 9216
LDS_TAB = LDS_PART + 8 * 3072
TABS = 1344
LDS_END = LDS_TAB + 2 * TABS

S_U, S_ARE, S_AIM, S_BRE, S_BIM, S_CRE, S_CIM, S_LDT = 4, 6, 8, 10, 12, 14, 16, 18
S_DSK, S_Q, S_K, S_V, S_SHK, S_SSMK, S_SSMD, S_GW = 20, 22, 24, 26, 28, 30, 32, 34
S_OUT, S_DBG, S_WS = 36, 38, 40
S_GRP, S_IDX, S_WAVE, S_D0, S_MASK, S_T0 = 42, 43, 44, 45, 46, 47
SRD_A, SRD_B = 48, 52
S_T1, S_T2, S_T3, S_T4 = 56, 57, 58, 59
S_LDTV, S_DSV, S_DBV = 60, 61, 62
S_EX = 64
S_DS, S_DB = 66, 68
S_SEL0, S_SEL1 = 70, 71


def sp(b):
    return f"s[{b}:{b + 1}]"


def srd(e, dst, base, size):
    e(f"s_mov_b32 s{dst}, s{base}")
    e(f"s_mov_b32 s{dst + 1}, s{base + 1}")
    e(f"s_mov_b32 s{dst + 2}, {size}")
    e(f"s_mov_b32 s{dst + 3}, 0x20000")


def prologue(e, rg, exit_label):
    e(f"s_cmp_ge_u32 s2, 256")
    e(f"s_cbranch_scc1 {exit_label}")
    e("s_load_dwordx16 s[4:19], s[0:1], 0")
    e("s_load_dwordx16 s[20:35], s[0:1], 64")
    e("s_load_dwordx4 s[36:39], s[0:1], 128")
    e("s_load_dwordx2 s[40:41], s[0:1], 144")
    t = rg.alloc()
    e(f"v_lshrrev_b32 v{t}, 6, v0")
    e(f"s_and_b32 s{S_GRP}, s2, 7")
    e(f"s_lshr_b32 s{S_IDX}, s2, 3")
    e(f"v_readfirstlane_b32 s{S_WAVE}, v{t}")
    e(f"s_lshl_b32 s{S_D0}, s{S_GRP}, 6")
    e(f"s_lshl_b32 s{S_T0}, s{S_IDX}, 1")
    e(f"s_add_u32 s{S_D0}, s{S_D0}, s{S_T0}")
    e(f"s_mov_b32 s{S_MASK}, 0xffff0000")
    rg.release(t)
    lane = rg.alloc()
    e(f"v_and_b32 v{lane}, 63, v0")
    return lane


def tile_issue(e, rg):
    t = {}
    c, r, off = rg.alloc(), rg.alloc(), rg.alloc()
    e(f"v_and_b32 v{c}, 7, v0")
    e(f"v_lshrrev_b32 v{r}, 3, v0")
    e(f"s_mul_i32 s{S_T0}, s{S_IDX}, {64 * ROWB}")
    e(f"s_lshl_b32 s{S_T1}, s{S_GRP}, 7")
    e(f"s_add_u32 s{S_T0}, s{S_T0}, s{S_T1}")
    e(f"v_mul_u32_u24 v{off}, {ROWB}, v{r}")
    e(f"v_lshl_add_u32 v{off}, v{c}, 4, v{off}")
    e(f"v_add_u32 v{off}, s{S_T0}, v{off}")
    t["U"], t["V"] = rg.alloc(4), rg.alloc(4)
    t["K"] = [rg.alloc(4) for _ in range(4)]
    t["W"] = rg.alloc(16)
    o = [rg.alloc() for _ in range(4)]
    for j in (1, 2, 3):
        e(f"v_subrev_u32 v{o[j - 1]}, {ROWB * j}, v{off}")
    e(f"s_lshl_b32 s{S_T1}, s{S_GRP}, 9")
    e(f"v_lshl_add_u32 v{o[3]}, v{c}, 6, s{S_T1}")
    srd(e, SRD_A, S_K, XBYTES)
    for j in range(4):
        e(f"global_load_dwordx4 {R(t['W'] + 4 * j, 4)}, v{o[3]}, {sp(S_SHK)} offset:{16 * j}")
    e(f"buffer_load_dwordx4 {R(t['K'][0], 4)}, v{off}, s[{SRD_A}:{SRD_A + 3}], 0 offen")
    e(f"global_load_dwordx4 {R(t['V'], 4)}, v{off}, {sp(S_V)}")
    e(f"global_load_dwordx4 {R(t['U'], 4)}, v{off}, {sp(S_U)}")
    for j in (1, 2, 3):
        e(f"buffer_load_dwordx4 {R(t['K'][j], 4)}, v{o[j - 1]}, s[{SRD_A}:{SRD_A + 3}], 0 offen")
    for x in o:
        rg.release(x)
    rg.release(off)
    wa, ra0, ra1, so, a, b = (rg.alloc() for _ in range(6))
    e(f"v_lshrrev_b32 v{a}, 2, v{r}")
    e(f"v_xor_b32 v{a}, v{a}, v{c}")
    e(f"v_lshlrev_b32 v{a}, 4, v{a}")
    e(f"v_lshl_add_u32 v{a}, v{c}, 10, v{a}")
    e(f"v_and_b32 v{b}, 3, v{r}")
    e(f"v_lshl_add_u32 v{a}, v{b}, 2, v{a}")
    e(f"v_add_u32 v{wa}, {LDS_TR}, v{a}")
    e(f"v_bfe_u32 v{a}, v0, 5, 3")
    e(f"v_lshlrev_b32 v{b}, 1, v{c}")
    e(f"v_xor_b32 v{a}, v{a}, v{b}")
    e(f"v_lshlrev_b32 v{a}, 4, v{a}")
    e(f"v_lshl_add_u32 v{a}, v{r}, 8, v{a}")
    e(f"v_add_u32 v{ra0}, {LDS_TR}, v{a}")
    e(f"v_xor_b32 v{ra1}, 16, v{ra0}")
    e(f"v_lshrrev_b32 v{a}, 8, v0")
    e(f"v_mul_u32_u24 v{a}, {D * 4096}, v{a}")
    e(f"v_bfe_u32 v{b}, v0, 3, 5")
    e(f"v_lshl_add_u32 v{a}, v{b}, 13, v{a}")
    e(f"s_lshl_b32 s{S_T0}, s{S_GRP}, 18")
    e(f"s_lshl_b32 s{S_T1}, s{S_IDX}, 7")
    e(f"s_sub_u32 s{S_T0}, s{S_T0}, s{S_T1}")
    e(f"s_add_u32 s{S_T0}, s{S_T0}, {WS_X + 4096 + 4080}")
    e(f"v_add_u32 v{a}, s{S_T0}, v{a}")
    e(f"v_lshlrev_b32 v{b}, 4, v{c}")
    e(f"v_sub_u32 v{so}, v{a}, v{b}")
    for x in (a, b, c, r):
        rg.release(x)
    t.update(wa=wa, ra0=ra0, ra1=ra1, so=so)
    e(f"s_mov_b32 s{S_SEL0}, 0x05040100")
    e(f"s_mov_b32 s{S_SEL1}, 0x07060302")
    return t


def tile_weights(e, rg, t):
    wf = rg.alloc(32)
    for ch in range(8):
        e(f"v_lshlrev_b32 v{wf + ch}, 16, v{t['W'] + 2 * ch}")
        e(f"v_and_b32 v{wf + 8 + ch}, s{S_MASK}, v{t['W'] + 2 * ch}")
        e(f"v_lshlrev_b32 v{wf + 16 + ch}, 16, v{t['W'] + 2 * ch + 1}")
        e(f"v_and_b32 v{wf + 24 + ch}, s{S_MASK}, v{t['W'] + 2 * ch + 1}")
    rg.release(t["W"], 16)
    t["wf"] = wf


def tile_compute(e, rg, t, opt):
    wf = t["wf"]
    for j in range(4):
        e(f"ds_write_b32 v{t['wa']}, v{t['U'] + j} offset:{256 * j}")
    kf = [[rg.alloc(2) for _ in range(5)] for _ in range(2)]
    acc = [rg.alloc(2) for _ in range(4)]
    for p0 in (0, 2):
        for q in (0, 1):
            p = p0 + q
            for j, src in enumerate(t["K"] + [t["V"]]):
                e(f"v_lshlrev_b32 v{kf[q][j]}, 16, v{src + p}")
                e(f"v_and_b32 v{kf[q][j] + 1}, s{S_MASK}, v{src + p}")
        for q in (0, 1):
            e(f"v_pk_mul_f32 {R(acc[p0 + q], 2)}, {R(kf[q][3], 2)}, {R(wf + 24 + 2 * (p0 + q), 2)}")
        for j in (2, 1, 0):
            for q in (0, 1):
                a = R(acc[p0 + q], 2)
                e(f"v_pk_fma_f32 {a}, {R(kf[q][j], 2)}, {R(wf + 8 * j + 2 * (p0 + q), 2)}, {a}")
        if opt.get("round_ks"):
            for q in (0, 1):
                a = acc[p0 + q]
                e(f"v_cvt_pk_bf16_f32 v{a + 1}, v{a}, v{a + 1}")
            for q in (0, 1):
                a = acc[p0 + q]
                e(f"v_lshlrev_b32 v{a}, 16, v{a + 1}")
                e(f"v_and_b32 v{a + 1}, s{S_MASK}, v{a + 1}")
        for q in (0, 1):
            a = R(acc[p0 + q], 2)
            e(f"v_pk_mul_f32 {a}, {a}, {R(kf[q][4], 2)}")
        for q in (0, 1):
            a = acc[p0 + q]
            e(f"v_cvt_pk_bf16_f32 v{a}, v{a}, v{a + 1}")
        for q in (0, 1):
            e(f"ds_write_b32 v{t['wa']}, v{acc[p0 + q]} offset:{8192 + 256 * (p0 + q)}")
    for q in (0, 1):
        for x in kf[q]:
            rg.release(x, 2)
    for x in acc:
        rg.release(x, 2)
    rg.release(wf, 32)
    for x in t["K"] + [t["U"], t["V"]]:
        rg.release(x, 4)


def tile_store(e, rg, t, sc):
    d = rg.alloc(8)
    e(f"ds_read_b128 {R(d, 4)}, v{t['ra0']}")
    e(f"ds_read_b128 {R(d + 4, 4)}, v{t['ra1']}")
    o = [rg.alloc(4), rg.alloc(4)]
    for chs, sel in enumerate((S_SEL0, S_SEL1)):
        for m in range(4):
            e(f"v_perm_b32 v{o[chs] + m}, v{d + 6 - 2 * m}, v{d + 7 - 2 * m}, s{sel}")
        e(f"global_store_dwordx4 v{t['so']}, {R(o[chs], 4)}, {sp(S_WS)} offset:{-4096 + 4096 * chs}{sc}")
    rg.release(d, 8)
    t["o"] = o


def tile_free(rg, t):
    for x in t["o"]:
        rg.release(x, 4)
    for k in ("wa", "ra0", "ra1", "so"):
        rg.release(t[k])


def gate_path(e, rg, lane, sc):
    srd(e, SRD_A, S_U, XBYTES)
    srd(e, SRD_B, S_GW, ROWB)
    off, gw = rg.alloc(), rg.alloc(4)
    e(f"v_lshlrev_b32 v{off}, 4, v{lane}")
    e(f"buffer_load_dwordx4 {R(gw, 4)}, v{off}, s[{SRD_B}:{SRD_B + 3}], 0 offen")
    e(f"s_lshl_b32 s{S_T0}, s{S_IDX}, 3")
    e(f"s_add_u32 s{S_T0}, s{S_T0}, s{S_WAVE}")
    e(f"s_mul_i32 s{S_T1}, s{S_T0}, {8 * ROWB}")
    e(f"v_add_u32 v{off}, s{S_T1}, v{off}")
    x = rg.alloc(32)
    off2 = rg.alloc()
    e(f"v_add_u32 v{off2}, {4 * ROWB}, v{off}")
    for row in range(8):
        e(f"buffer_load_dwordx4 {R(x + 4 * row, 4)}, v{off if row < 4 else off2}, s[{SRD_A}:{SRD_A + 3}], 0 offen offset:{(row & 3) * ROWB}")
    wf = rg.alloc(8)
    for j in range(4):
        e(f"v_lshlrev_b32 v{wf + 2 * j}, 16, v{gw + j}")
        e(f"v_and_b32 v{wf + 2 * j + 1}, s{S_MASK}, v{gw + j}")
    e(f"s_mov_b32 s{S_T2}, 0x3f803f80")
    s = rg.alloc(8)
    tmp = rg.alloc(8)
    for row in range(8):
        for j in range(4):
            e(f"v_lshlrev_b32 v{tmp + 2 * j}, 16, v{x + 4 * row + j}")
            e(f"v_and_b32 v{tmp + 2 * j + 1}, s{S_MASK}, v{x + 4 * row + j}")
        for j in range(4):
            e(f"v_pk_mul_f32 {R(tmp + 2 * j, 2)}, {R(tmp + 2 * j, 2)}, {R(wf + 2 * j, 2)}")
        for j in range(4):
            e(f"v_cvt_pk_bf16_f32 v{tmp + 2 * j}, v{tmp + 2 * j}, v{tmp + 2 * j + 1}")
        for j in range(4):
            e(f"v_lshlrev_b32 v{tmp + 2 * j + 1}, 16, v{tmp + 2 * j}")
            e(f"v_and_b32 v{tmp + 2 * j}, s{S_MASK}, v{tmp + 2 * j}")
        e(f"v_pk_add_f32 {R(tmp, 2)}, {R(tmp, 2)}, {R(tmp + 2, 2)}")
        e(f"v_pk_add_f32 {R(tmp + 4, 2)}, {R(tmp + 4, 2)}, {R(tmp + 6, 2)}")
        e(f"v_pk_add_f32 {R(tmp, 2)}, {R(tmp, 2)}, {R(tmp + 4, 2)}")
        e(f"v_add_f32 v{s + row}, v{tmp}, v{tmp + 1}")
    for ctl in ("row_shr:1", "row_shr:2", "row_shr:4", "row_shr:8"):
        for row in range(8):
            e(f"v_add_f32_dpp v{s + row}, v{s + row}, v{s + row} {ctl} row_mask:0xf bank_mask:0xf bound_ctrl:0")
    for ctl, msk in (("row_bcast:15", "0xa"), ("row_bcast:31", "0xc")):
        for row in range(8):
            e(f"v_add_f32_dpp v{s + row}, v{s + row}, v{s + row} {ctl} row_mask:{msk} bank_mask:0xf")
    for row in range(8):
        e(f"v_readlane_b32 s{72 + row}, v{s + row}, 63")
    g = tmp
    e(f"v_mov_b32 v{g}, 0")
    for row in range(8):
        e(f"v_writelane_b32 v{g}, s{72 + row}, {row}")
    e(f"v_cvt_pk_bf16_f32 v{g}, v{g}, v{g}")
    e(f"v_and_b32 v{g}, s{S_MASK}, v{g}")
    e(f"v_mul_f32 v{g}, 0xbfb8aa3b, v{g}")
    e(f"v_exp_f32 v{g}, v{g}")
    e(f"v_add_f32 v{g}, 1.0, v{g}")
    e(f"v_rcp_f32 v{g}, v{g}")
    e(f"v_cvt_pk_bf16_f32 v{g}, v{g}, v{g}")
    e(f"s_lshl_b32 s{S_T0}, s{S_T0}, 4")
    e(f"s_add_u32 s{S_T0}, s{S_T0}, {WS_G}")
    e(f"v_lshl_add_u32 v{off}, v{lane}, 1, s{S_T0}")
    e(f"s_mov_b64 exec, 0xff")
    e(f"global_store_short v{off}, v{g}, {sp(S_WS)}{sc}")
    e(f"s_mov_b64 exec, -1")


def cmul(e, d, a, b):
    e(f"v_pk_mul_f32 {R(d, 2)}, {R(a, 2)}, {R(b, 2)} op_sel:[0,0] op_sel_hi:[0,1]")
    e(f"v_pk_fma_f32 {R(d, 2)}, {R(a, 2)}, {R(b, 2)}, {R(d, 2)} op_sel:[1,1,0] op_sel_hi:[1,0,1] neg_lo:[1,0,0]")


def cmul_group(e, items):
    for d, a, b in items:
        e(f"v_pk_mul_f32 {R(d, 2)}, {R(a, 2)}, {R(b, 2)} op_sel:[0,0] op_sel_hi:[0,1]")
    for d, a, b in items:
        e(f"v_pk_fma_f32 {R(d, 2)}, {R(a, 2)}, {R(b, 2)}, {R(d, 2)} op_sel:[1,1,0] op_sel_hi:[1,0,1] neg_lo:[1,0,0]")


def param_issue(e, rg, lane):
    p = {}
    e(f"s_lshl_b32 s{S_T0}, s{S_D0}, 1")
    e(f"s_load_dword s{S_LDTV}, {sp(S_LDT)}, s{S_T0}")
    e(f"s_load_dword s{S_DSV}, {sp(S_DSK)}, s{S_T0}")
    e(f"s_load_dword s{S_DBV}, {sp(S_SSMD)}, s{S_T0}")
    e(f"s_lshl_b32 s{S_T1}, s{S_D0}, 9")
    e(f"s_lshl_b32 s{S_T2}, s{S_WAVE}, 7")
    e(f"s_add_u32 s{S_T1}, s{S_T1}, s{S_T2}")
    off = rg.alloc()
    e(f"v_lshl_add_u32 v{off}, v{lane}, 1, s{S_T1}")
    for nm, (re_, im_) in dict(A=(S_ARE, S_AIM), B=(S_BRE, S_BIM), C=(S_CRE, S_CIM)).items():
        p[nm] = rg.alloc(2)
        e(f"v_mov_b32 v{p[nm]}, 0")
        e(f"v_mov_b32 v{p[nm] + 1}, 0")
        e(f"global_load_short_d16_hi v{p[nm]}, v{off}, {sp(re_)}")
        e(f"global_load_short_d16_hi v{p[nm] + 1}, v{off}, {sp(im_)}")
    rg.release(off)
    return p


def ssmk_issue(e, rg):
    s = {}
    e(f"s_lshr_b32 s{S_T0}, s{S_WAVE}, 2")
    e(f"s_add_u32 s{S_T0}, s{S_T0}, s{S_D0}")
    e(f"s_lshl_b32 s{S_T0}, s{S_T0}, 12")
    e(f"s_add_u32 s{SRD_B}, s{S_SSMK}, s{S_T0}")
    e(f"s_addc_u32 s{SRD_B + 1}, s{S_SSMK + 1}, 0")
    e(f"s_mov_b32 s{SRD_B + 2}, 4096")
    e(f"s_mov_b32 s{SRD_B + 3}, 0x20000")
    x16, xm = rg.alloc(), rg.alloc()
    e(f"v_and_b32 v{x16}, 255, v0")
    e(f"v_lshlrev_b32 v{x16}, 4, v{x16}")
    e(f"v_subrev_u32 v{xm}, 16, v{x16}")
    s["D"] = rg.alloc(8)
    e(f"buffer_load_dwordx4 {R(s['D'], 4)}, v{xm}, s[{SRD_B}:{SRD_B + 3}], 0 offen")
    e(f"buffer_load_dwordx4 {R(s['D'] + 4, 4)}, v{x16}, s[{SRD_B}:{SRD_B + 3}], 0 offen")
    rg.release(xm)
    s["x16"] = x16
    return s


def misc_addr(e, rg, lane, x16):
    m = {}
    j, G, a, b = (rg.alloc() for _ in range(4))
    e(f"v_and_b32 v{j}, 15, v{lane}")
    e(f"v_lshrrev_b32 v{G}, 4, v{lane}")
    e(f"s_mul_i32 s{S_T0}, s{S_WAVE}, {KCOPY}")
    m["kw"] = rg.alloc()
    e(f"v_lshl_add_u32 v{m['kw']}, v{lane}, 4, s{S_T0}")
    m["kr"] = rg.alloc()
    e(f"v_bfe_u32 v{a}, v{j}, 1, 1")
    e(f"v_mul_u32_u24 v{a}, 2112, v{a}")
    e(f"v_and_b32 v{b}, 1, v{j}")
    e(f"v_lshl_add_u32 v{a}, v{b}, 3, v{a}")
    e(f"v_lshrrev_b32 v{b}, 2, v{j}")
    e(f"v_lshl_add_u32 v{b}, v{G}, 3, v{b}")
    e(f"v_lshl_add_u32 v{a}, v{b}, 4, v{a}")
    e(f"v_add_u32 v{m['kr']}, s{S_T0}, v{a}")
    e(f"s_mul_i32 s{S_T0}, s{S_WAVE}, 3072")
    e(f"s_add_u32 s{S_T0}, s{S_T0}, {LDS_PART}")
    for k in ("p0", "p1a", "p1b", "p2"):
        m[k] = rg.alloc()
    e(f"v_lshrrev_b32 v{a}, 1, v{G}")
    e(f"v_lshlrev_b32 v{a}, 9, v{a}")
    e(f"v_and_b32 v{b}, 1, v{G}")
    e(f"v_lshl_add_u32 v{a}, v{b}, 4, v{a}")
    e(f"v_lshl_add_u32 v{a}, v{j}, 5, v{a}")
    e(f"v_add_u32 v{m['p0']}, s{S_T0}, v{a}")
    e(f"v_cmp_gt_u32 vcc, 2, v{G}")
    e(f"v_lshlrev_b32 v{a}, 3, v{j}")
    e(f"v_lshlrev_b32 v{b}, 4, v{j}")
    e(f"v_cndmask_b32 v{a}, v{a}, v{b}, vcc")
    e(f"v_lshl_add_u32 v{a}, v{G}, 8, v{a}")
    e(f"v_add_u32 v{a}, 1024, v{a}")
    e(f"v_add_u32 v{m['p1a']}, s{S_T0}, v{a}")
    e(f"v_mov_b32 v{a}, 128")
    e(f"v_cndmask_b32 v{a}, v{a}, 8, vcc")
    e(f"v_add_u32 v{m['p1b']}, v{m['p1a']}, v{a}")
    e(f"v_lshlrev_b32 v{a}, 6, v{j}")
    e(f"v_lshl_add_u32 v{a}, v{G}, 4, v{a}")
    e(f"v_add_u32 v{a}, 2048, v{a}")
    e(f"v_add_u32 v{m['p2']}, s{S_T0}, v{a}")
    e(f"s_lshr_b32 s{S_T1}, s{S_WAVE}, 2")
    e(f"s_mul_i32 s{S_T0}, s{S_T1}, {4 * 3072}")
    e(f"s_add_u32 s{S_T0}, s{S_T0}, {LDS_PART}")
    m["rr"], m["rw"] = rg.alloc(), rg.alloc()
    e(f"v_add_u32 v{m['rr']}, s{S_T0}, v{x16}")
    e(f"s_mul_i32 s{S_T2}, s{S_T1}, {TABS}")
    e(f"s_add_u32 s{S_T2}, s{S_T2}, {LDS_TAB}")
    e(f"v_lshrrev_b32 v{a}, 1, v{x16}")
    e(f"v_add_u32 v{m['rw']}, s{S_T2}, v{a}")
    m["ga"] = rg.alloc(12)
    f0, f1, l0 = rg.alloc(), rg.alloc(), rg.alloc()
    e(f"v_lshrrev_b32 v{l0}, 1, v{x16}")
    e(f"v_subrev_u32 v{l0}, 8, v{l0}")
    e(f"v_cmp_gt_i32 {sp(S_EX)}, 16, v{x16}")
    e(f"v_cmp_gt_i32 vcc, 128, v{l0}")
    e(f"s_sub_u32 s{S_T3}, s{S_T2}, {2 * 17024}")
    for k in range(0, 12, 2):
        e(f"v_add_u32 v{a}, {k}, v{l0}")
        e(f"v_add_u32 v{b}, {k + 1}, v{l0}")
        e(f"v_cvt_f32_i32 v{f0}, v{a}")
        e(f"v_cvt_f32_i32 v{f1}, v{b}")
        e(f"v_cvt_pk_bf16_f32 v{f1}, v{f0}, v{f1}")
        e(f"v_lshl_add_u32 v{a}, v{a}, 1, s{S_T2}")
        e(f"v_lshl_add_u32 v{b}, v{b}, 1, s{S_T2}")
        e(f"v_and_b32 v{f0}, 0xffff, v{f1}")
        e(f"v_lshrrev_b32 v{f1}, 16, v{f1}")
        e(f"v_lshl_add_u32 v{f0}, v{f0}, 1, s{S_T3}")
        e(f"v_lshl_add_u32 v{f1}, v{f1}, 1, s{S_T3}")
        e(f"v_cndmask_b32 v{m['ga'] + k}, v{f0}, v{a}, vcc")
        e(f"v_cndmask_b32 v{m['ga'] + k + 1}, v{f1}, v{b}, vcc")
    e(f"s_add_u32 s{S_T3}, s{S_T2}, {648 * 2}")
    e(f"v_mov_b32 v{a}, s{S_T3}")
    for k in range(8):
        e(f"v_cndmask_b32 v{m['ga'] + k}, v{m['ga'] + k}, v{a}, {sp(S_EX)}")
    m["tab"] = rg.alloc()
    e(f"v_mov_b32 v{m['tab']}, s{S_T2}")
    e(f"s_mul_i32 s{S_T0}, s{S_T1}, {KREG}")
    e(f"s_add_u32 s{S_T0}, s{S_T0}, 16")
    m["cw"] = rg.alloc()
    e(f"v_add_u32 v{m['cw']}, s{S_T0}, v{x16}")
    for x in (j, G, a, b, f0, f1, l0):
        rg.release(x)
    return m


def write_copies(e, rg, dd, cw, x16, base, fill_tail=None):
    q = rg.alloc(4)
    q2 = rg.alloc(4)
    q3 = rg.alloc(4)
    e(f"ds_write_b128 v{cw}, {R(dd, 4)} offset:{base}")
    for k in range(4):
        e(f"v_alignbit_b32 v{q + k}, v{dd + k + 1}, v{dd + k}, 16")
    e(f"ds_write_b128 v{cw}, {R(q, 4)} offset:{base + KCOPY}")
    e(f"v_pk_mov_b32 {R(q2, 2)}, {R(dd, 2)}, {R(dd + 2, 2)} op_sel:[1,0]")
    e(f"v_pk_mov_b32 {R(q2 + 2, 2)}, {R(dd + 2, 2)}, {R(dd + 4, 2)} op_sel:[1,0]")
    e(f"ds_write_b128 v{cw}, {R(q2, 4)} offset:{base + 2 * KCOPY}")
    for k in range(4):
        e(f"v_alignbit_b32 v{q3 + k}, v{dd + k + 2}, v{dd + k + 1}, 16")
    e(f"ds_write_b128 v{cw}, {R(q3, 4)} offset:{base + 3 * KCOPY}")
    e(f"v_cmp_eq_u32 vcc, {255 * 16}, v{x16}")
    e(f"s_and_saveexec_b64 {sp(S_EX)}, vcc")
    if fill_tail:
        fill_tail()
    e(f"ds_write_b128 v{cw}, {R(dd + 4, 4)} offset:{base + 16}")
    for k in range(4):
        e(f"v_alignbit_b32 v{q + k}, v{dd + min(k + 5, 7)}, v{dd + k + 4}, 16")
    e(f"ds_write_b128 v{cw}, {R(q, 4)} offset:{base + KCOPY + 16}")
    e(f"v_pk_mov_b32 {R(q2, 2)}, {R(dd + 4, 2)}, {R(dd + 6, 2)} op_sel:[1,0]")
    e(f"v_pk_mov_b32 {R(q2 + 2, 2)}, {R(dd + 6, 2)}, {R(dd + 6, 2)} op_sel:[1,0]")
    e(f"ds_write_b128 v{cw}, {R(q2, 4)} offset:{base + 2 * KCOPY + 16}")
    for k in range(4):
        e(f"v_alignbit_b32 v{q3 + k}, v{dd + min(k + 6, 7)}, v{dd + min(k + 5, 7)}, 16")
    e(f"ds_write_b128 v{cw}, {R(q3, 4)} offset:{base + 3 * KCOPY + 16}")
    e(f"s_mov_b64 exec, {sp(S_EX)}")
    e(f"v_cmp_eq_u32 vcc, 0, v{x16}")
    e(f"s_and_saveexec_b64 {sp(S_EX)}, vcc")
    for k in range(4):
        e(f"v_mov_b32 v{q + k}, 0")
    z = rg.alloc()
    e(f"v_subrev_u32 v{z}, 16, v{cw}")
    for c in range(4):
        e(f"ds_write_b128 v{z}, {R(q, 4)} offset:{base + c * KCOPY}")
    e(f"s_mov_b64 exec, {sp(S_EX)}")
    rg.release(z)
    for x in (q, q2, q3):
        rg.release(x, 4)


def kgen_write_tile(e, rg, m, rows, neg_im):
    q = rg.alloc(16)
    n = len(rows)
    sg = "-" if neg_im else ""
    for plane in (0, 1):
        for k in range(0, n, 2):
            r0, r1 = rows[k], rows[min(k + 1, n - 1)]
            if plane == 0:
                s0 = "1.0" if r0 is None else f"v{r0}"
                e(f"v_cvt_pk_bf16_f32 v{q + 8 * plane + k // 2}, {s0}, v{r1}")
            else:
                s0 = "0" if r0 is None else f"{sg}v{r0 + 1}"
                e(f"v_cvt_pk_bf16_f32 v{q + 8 * plane + k // 2}, {s0}, {sg}v{r1 + 1}")
        e(f"ds_write_b128 v{m['kw']}, {R(q + 8 * plane, 4)} offset:{1024 * plane}")
        if n > 9:
            e(f"ds_write_b128 v{m['kw']}, {R(q + 8 * plane + 4, 4)} offset:{1024 * plane + 2112}")
        else:
            e(f"ds_write_b32 v{m['kw']}, v{q + 8 * plane + 4} offset:{1024 * plane + 2112}")
    rg.release(q, 16)


def kgen_read_tile(e, rg, m):
    f = rg.alloc(16)
    for plane in (0, 1):
        for s in (0, 1):
            for hh in (0, 1):
                e(f"ds_read_b64_tr_b16 {R(f + 8 * plane + 4 * s + 2 * hh, 2)}, v{m['kr']} offset:{1024 * plane + 512 * s + 64 * hh}")
    return f


def kgen_mfma(e, acc, fa, fb):
    for k in range(4):
        c = "0" if k == 0 else R(acc, 4)
        e(f"v_mfma_f32_16x16x32_bf16 {R(acc, 4)}, {R(fa + 4 * k, 4)}, {R(fb + 4 * k, 4)}, {c}")


def kgen(e, rg, p, m):
    e(f"s_lshl_b32 s{S_T0}, s{S_LDTV}, 16")
    e(f"s_and_b32 s{S_T1}, s{S_LDTV}, s{S_MASK}")
    e(f"s_cmp_lt_u32 s{S_WAVE}, 4")
    e(f"s_cselect_b32 s{S_T0}, s{S_T0}, s{S_T1}")
    dt = rg.alloc(2)
    lo, ex = rg.alloc(), rg.alloc()
    e(f"v_mov_b32 v{ex}, 0x3fb8aa3b")
    e(f"v_mul_f32 v{dt}, s{S_T0}, v{ex}")
    e(f"v_fma_f32 v{lo}, s{S_T0}, v{ex}, -v{dt}")
    e(f"v_mov_b32 v{dt + 1}, 0x32a57060")
    e(f"v_fmac_f32 v{lo}, s{S_T0}, v{dt + 1}")
    e(f"v_exp_f32 v{ex}, v{dt}")
    e(f"v_mul_f32 v{lo}, 0x3f317218, v{lo}")
    e(f"v_fma_f32 v{ex}, v{ex}, v{lo}, v{ex}")
    e(f"v_cvt_pk_bf16_f32 v{dt}, v{ex}, v{ex}")
    e(f"v_and_b32 v{dt}, s{S_MASK}, v{dt}")
    rg.release(lo)
    rg.release(ex)
    A, B, C = p["A"], p["B"], p["C"]
    e(f"v_pk_mul_f32 {R(A, 2)}, {R(A, 2)}, {R(dt, 2)} op_sel_hi:[1,0]")
    e(f"v_pk_mul_f32 {R(B, 2)}, {R(B, 2)}, {R(dt, 2)} op_sel_hi:[1,0]")
    e(f"v_mul_f32 v{A}, 0x3fb8aa3b, v{A}")
    e(f"v_mul_f32 v{A + 1}, 0.15915494, v{A + 1}")
    rg.release(dt, 2)
    z = {k: rg.alloc(2) for k in (1, 2, 4, 128, 256, 512, 1024)}
    Bz = {0: rg.alloc(2)}
    cmul(e, Bz[0], C, B)
    for zz, sc in ((z[1], 1), (z[128], 128)):
        t = rg.alloc(2)
        if sc == 1:
            aa, bb = A, A + 1
        else:
            e(f"v_pk_mul_f32 {R(A, 2)}, {R(A, 2)}, {R(p['cst'], 2)} op_sel_hi:[1,0]")
            aa, bb = A, A + 1
        e(f"v_rndne_f32 v{t + 1}, v{bb}")
        e(f"v_exp_f32 v{t}, v{aa}")
        e(f"v_sub_f32 v{t + 1}, v{bb}, v{t + 1}")
        e(f"v_cos_f32 v{zz}, v{t + 1}")
        e(f"v_sin_f32 v{zz + 1}, v{t + 1}")
        e(f"v_pk_mul_f32 {R(zz, 2)}, {R(zz, 2)}, {R(t, 2)} op_sel_hi:[1,0]")
        rg.release(t, 2)
    for x in (A, B, C):
        rg.release(x, 2)
    O = {j: rg.alloc(2) for j in range(1, 16)}
    for b in (1, 2):
        Bz[b] = rg.alloc(2)
    cmul_group(e, [(z[2], z[1], z[1]), (z[256], z[128], z[128]), (Bz[1], Bz[0], z[1])])
    cmul_group(e, [(z[4], z[2], z[2]), (z[512], z[256], z[256]), (Bz[2], Bz[0], z[2])])
    for b in (3, 4):
        Bz[b] = rg.alloc(2)
    cmul_group(e, [(O[1], z[4], z[4]), (z[1024], z[512], z[512]), (Bz[3], Bz[1], z[2]), (Bz[4], Bz[0], z[4])])
    for b in (5, 6, 7):
        Bz[b] = rg.alloc(2)
    cmul_group(e, [(O[2], O[1], O[1]), (Bz[5], Bz[1], z[4]), (Bz[6], Bz[2], z[4]), (Bz[7], Bz[3], z[4])])
    cmul_group(e, [(O[3], O[2], O[1]), (O[4], O[2], O[2])])
    cmul_group(e, [(O[5], O[4], O[1]), (O[6], O[4], O[2]), (O[7], O[4], O[3]), (O[8], O[4], O[4])])
    cmul_group(e, [(O[8 + j], O[8], O[j]) for j in range(1, 8)])
    for k in (1, 2, 4):
        rg.release(z[k], 2)
    kgen_write_tile(e, rg, m, [None] + [O[j] for j in range(1, 16)], False)
    for j in O:
        rg.release(O[j], 2)
    fo = kgen_read_tile(e, rg, m)
    for b in range(8):
        Bz[128 + b] = rg.alloc(2)
    cmul_group(e, [(Bz[128 + b], Bz[b], z[128]) for b in range(8)])
    kgen_write_tile(e, rg, m, [Bz[b] for b in list(range(8)) + list(range(128, 136))], True)
    f0 = kgen_read_tile(e, rg, m)
    for b in (1, 3, 5, 7, 129, 131, 133, 135):
        rg.release(Bz.pop(b), 2)
    rg.release(z[128], 2)
    t1 = [(256 + b, b, 256) for b in (0, 2, 4, 6, 128, 130, 132, 134)]
    for n, _, _ in t1:
        Bz[n] = rg.alloc(2)
    cmul_group(e, [(Bz[n], Bz[s], z[k]) for n, s, k in t1])
    t2 = [(512 + b, b, 512) for b in (0, 4, 128, 132, 256, 260, 384, 388)]
    for n, _, _ in t2:
        Bz[n] = rg.alloc(2)
    cmul_group(e, [(Bz[n], Bz[s], z[k]) for n, s, k in t2])
    acc = [rg.alloc(4) for _ in range(3)]
    kgen_mfma(e, acc[0], f0, fo)
    rg.release(f0, 16)
    kgen_write_tile(e, rg, m, [Bz[n] for n, _, _ in t1 + t2], True)
    f1 = kgen_read_tile(e, rg, m)
    for b in (2, 4, 6, 130, 132, 134, 258, 260, 262, 386, 388, 390, 516, 644, 772, 900):
        rg.release(Bz.pop(b), 2)
    t3 = [(1024 + b, b, 1024) for b in range(0, 1024, 128)]
    for n, _, _ in t3:
        Bz[n] = rg.alloc(2)
    cmul_group(e, [(Bz[n], Bz[s], z[k]) for n, s, k in t3])
    Bz[2048] = rg.alloc(2)
    cmul(e, Bz[2048], Bz[1024], z[1024])
    e(f"ds_write_b128 v{m['p0']}, {R(acc[0], 4)}")
    kgen_mfma(e, acc[1], f1, fo)
    rg.release(f1, 16)
    kgen_write_tile(e, rg, m, [Bz[n] for n, _, _ in t3] + [Bz[2048]], True)
    f2 = kgen_read_tile(e, rg, m)
    for b in list(Bz):
        rg.release(Bz.pop(b), 2)
    for k in (256, 512, 1024):
        rg.release(z[k], 2)
    e(f"ds_write_b64 v{m['p1a']}, {R(acc[1], 2)}")
    e(f"ds_write_b64 v{m['p1b']}, {R(acc[1] + 2, 2)}")
    kgen_mfma(e, acc[2], fo, f2)
    e(f"ds_write_b128 v{m['p2']}, {R(acc[2], 4)}")
    rg.release(f2, 16)
    rg.release(fo, 16)
    for x in acc:
        rg.release(x, 4)
    for k in ("kw", "kr", "p0", "p1a", "p1b", "p2"):
        rg.release(m[k])


def kreduce(e, rg, m, x16):
    q = rg.alloc(16)
    e(f"v_cmp_gt_u32 vcc, {163 * 16}, v{x16}")
    e(f"s_and_saveexec_b64 {sp(S_EX)}, vcc")
    for w in range(4):
        e(f"ds_read_b128 {R(q + 4 * w, 4)}, v{m['rr']} offset:{3072 * w}")
    e(f"v_cmp_eq_u32 vcc, {162 * 16}, v{x16}")
    for h in (0, 2):
        e(f"v_pk_add_f32 {R(q + h, 2)}, {R(q + h, 2)}, {R(q + 4 + h, 2)}")
        e(f"v_pk_add_f32 {R(q + 8 + h, 2)}, {R(q + 8 + h, 2)}, {R(q + 12 + h, 2)}")
    for h in (0, 2):
        e(f"v_pk_add_f32 {R(q + h, 2)}, {R(q + h, 2)}, {R(q + 8 + h, 2)}")
    e(f"v_cvt_pk_bf16_f32 v{q}, v{q}, v{q + 1}")
    e(f"v_cvt_pk_bf16_f32 v{q + 1}, v{q + 2}, v{q + 3}")
    e(f"v_cndmask_b32 v{q}, v{q}, 0, vcc")
    e(f"v_cndmask_b32 v{q + 1}, v{q + 1}, 0, vcc")
    e(f"ds_write_b64 v{m['rw']}, {R(q, 2)}")
    e(f"s_mov_b64 exec, {sp(S_EX)}")
    rg.release(q, 16)
    rg.release(m["rr"])
    rg.release(m["rw"])


def kgather(e, rg, m, x16):
    dd, hi = rg.alloc(8), rg.alloc(6)
    for k in range(6):
        e(f"ds_read_u16 v{dd + k}, v{m['ga'] + 2 * k}")
        e(f"ds_read_u16 v{hi + k}, v{m['ga'] + 2 * k + 1}")
    e(f"ds_read_u16 v{dd + 6}, v{m['tab']} offset:1280")
    for k in range(6):
        e(f"v_lshl_or_b32 v{dd + k}, v{hi + k}, 16, v{dd + k}")
    e(f"v_lshl_or_b32 v{dd + 6}, v{dd + 6}, 16, v{dd + 6}")
    e(f"v_mov_b32 v{dd + 7}, v{dd + 6}")
    write_copies(e, rg, dd, m["cw"], x16, 0)
    rg.release(dd, 8)
    rg.release(hi, 6)
    rg.release(m["ga"], 12)
    rg.release(m["tab"])


def zero_pads(e, rg):
    q, a = rg.alloc(4), rg.alloc()
    for k in range(4):
        e(f"v_mov_b32 v{q + k}, 0")
    b = rg.alloc()
    e(f"v_bfe_u32 v{a}, v0, 6, 2")
    e(f"v_mul_u32_u24 v{a}, 5120, v{a}")
    e(f"v_and_b32 v{b}, 63, v0")
    e(f"v_lshl_add_u32 v{a}, v{b}, 4, v{a}")
    e(f"v_add_u32 v{a}, {LDS_B + 4096}, v{a}")
    e(f"ds_write_b128 v{a}, {R(q, 4)}")
    rg.release(q, 4)
    rg.release(a)
    rg.release(b)


def stage_addr(e, rg, x16):
    s = {}
    s["go"], s["lw"] = rg.alloc(), rg.alloc()
    e(f"s_lshr_b32 s{S_T1}, s{S_WAVE}, 2")
    e(f"s_add_u32 s{S_T0}, s{S_T1}, s{S_D0}")
    e(f"s_lshl_b32 s{S_T0}, s{S_T0}, 12")
    e(f"v_add_u32 v{s['go']}, s{S_T0}, v{x16}")
    e(f"s_mul_i32 s{S_T1}, s{S_T1}, 5120")
    e(f"s_add_u32 s{S_T1}, s{S_T1}, {LDS_B}")
    e(f"v_add_u32 v{s['lw']}, s{S_T1}, v{x16}")
    s["go2"] = rg.alloc()
    e(f"v_add_u32 v{s['go2']}, {D * 4096}, v{s['go']}")
    return s


def stage_issue(e, rg, s, sc):
    s["d"] = rg.alloc(8)
    e(f"global_load_dwordx4 {R(s['d'], 4)}, v{s['go']}, {sp(S_WS)}{sc}")
    e(f"global_load_dwordx4 {R(s['d'] + 4, 4)}, v{s['go2']}, {sp(S_WS)}{sc}")


def stage_write(e, rg, s):
    e(f"ds_write_b128 v{s['lw']}, {R(s['d'], 4)}")
    e(f"ds_write_b128 v{s['lw']}, {R(s['d'] + 4, 4)} offset:{2 * 5120}")
    rg.release(s["d"], 8)
    for k in ("go", "go2", "lw"):
        rg.release(s[k])


PHASES = [
    (0, 1, 0, 8), (1, 7, 0, 24), (3, 5, 24, 16), (5, 3, 40, 16), (7, 1, 56, 8)]


def conv_addr(e, rg, lane):
    c = {}
    i, G, a, b, J, p = (rg.alloc() for _ in range(6))
    e(f"v_and_b32 v{i}, 15, v{lane}")
    e(f"v_lshrrev_b32 v{G}, 4, v{lane}")
    e(f"v_lshrrev_b32 v{J}, 1, v{i}")
    e(f"v_and_b32 v{p}, 1, v{i}")
    e(f"v_add_u32 v{a}, 1, v{i}")
    e(f"v_and_b32 v{b}, 3, v{a}")
    e(f"v_sub_u32 v{a}, v{a}, v{b}")
    e(f"v_lshl_add_u32 v{a}, v{G}, 3, v{a}")
    e(f"v_lshlrev_b32 v{a}, 1, v{a}")
    e(f"v_mul_u32_u24 v{b}, {KCOPY}, v{b}")
    e(f"s_mul_i32 s{S_T0}, s{S_WAVE}, {KREG}")
    c["a"] = rg.alloc()
    e(f"v_add3_u32 v{c['a']}, v{a}, v{b}, s{S_T0}")
    e(f"s_mul_i32 s{S_T0}, s{S_WAVE}, 5120")
    e(f"s_add_u32 s{S_T0}, s{S_T0}, {LDS_B + 32}")
    e(f"s_mul_i32 s{S_T1}, s{S_WAVE}, 9216")
    e(f"s_add_u32 s{S_T1}, s{S_T1}, {LDS_Y}")
    e(f"v_lshlrev_b32 v{a}, 4, v{G}")
    e(f"v_lshl_add_u32 v{b}, v{p}, 6, v{a}")
    e(f"v_lshlrev_b32 v{p}, 5, v{p}")
    e(f"v_sub_u32 v{a}, v{a}, v{p}")
    e(f"v_add_u32 v{a}, s{S_T0}, v{a}")
    e(f"v_add_u32 v{b}, s{S_T1}, v{b}")
    e(f"v_sub_u32 v{i}, 7, v{J}")
    for T in sorted({ph[1] for ph in PHASES}):
        c["b", T], c["y", T] = rg.alloc(), rg.alloc()
        e(f"v_mad_u32_u24 v{c['b', T]}, v{i}, {64 * T if 64 * T <= 64 else 's%d' % S_T2}, v{a}" if T == 1 else f"s_movk_i32 s{S_T2}, {64 * T}")
        if T != 1:
            e(f"v_mad_u32_u24 v{c['b', T]}, v{i}, s{S_T2}, v{a}")
        e(f"s_movk_i32 s{S_T2}, {144 * T}")
        e(f"v_mad_u32_u24 v{c['y', T]}, v{J}, s{S_T2}, v{b}")
    for x in (i, G, a, b, J, p):
        rg.release(x)
    return c


def conv_schedule():
    def steps(ph):
        b0, T, m0, n = PHASES[ph]
        return [[(ph, tau, nu + tau) for tau in range(T - 1, -1, -1) if m0 <= nu + tau < m0 + n]
                for nu in range(m0 - T + 1, m0 + n)]
    seq = []
    s1 = steps(1)
    for k, st in enumerate(s1):
        seq += st
        nu = k - 6
        if 0 <= nu + 3 < 8:
            seq.append((0, 0, nu + 3))
    for st in steps(2):
        seq += st
    s3, s4 = steps(3), steps(4)
    for k, st in enumerate(s3):
        seq += st
        if k % 2 == 1 and s4:
            seq += s4.pop(0)
    for st in s4:
        seq += st
    return seq


def conv(e, rg, c, look=12, na=12, nb=5):
    seq = conv_schedule()
    akey = lambda op: ("A", op[2])
    bkey = lambda op: ("B", op[0], op[2] - op[1])
    first, last = {}, {}
    for n, op in enumerate(seq):
        for k in (akey(op), bkey(op)):
            first.setdefault(k, n)
            last[k] = n
    tile_first, tile_last = {}, {}
    for n, op in enumerate(seq):
        tile_first.setdefault(op[:2], n)
        tile_last[op[:2]] = n
    pool = {"A": [rg.alloc(4) for _ in range(na)], "B": [rg.alloc(4) for _ in range(nb)]}
    allp = pool["A"] + pool["B"]
    acc = {t: rg.alloc(4) for t in sorted(tile_first)}
    tmp = [rg.alloc(4) for _ in range(3)]
    loc = {}
    todo = sorted(first, key=lambda k: first[k])
    written = set()

    def load(k):
        r = pool[k[0]].pop(0)
        loc[k] = r
        if k[0] == "A":
            e(f"ds_read_b64 {R(r, 2)}, v{c['a']} offset:{64 * k[1]}")
            e(f"ds_read_b64 {R(r + 2, 2)}, v{c['a']} offset:{64 * k[1] + 8}")
        else:
            b0, T, m0, n = PHASES[k[1]]
            off = 4064 - 512 * b0 + 64 * k[2] - 448 * T - 32
            assert off >= 0
            e(f"ds_read_b128 {R(r, 4)}, v{c['b', T]} offset:{off}")

    rmw = {1: False, 0: False, 2: True, 3: True, 4: True}
    order = {0: 0, 1: 0, 2: 1, 3: 2, 4: 3}
    side = []
    by_last = sorted(tile_last, key=lambda t: (order[t[0]], tile_last[t]))
    wdone = {}
    phase_done = {ph: max(tile_last[t] for t in tile_last if t[0] == ph) for ph in range(len(PHASES))}
    prev = {2: 1, 3: 2, 4: 3}
    tfree = [0] * len(tmp)
    for t in by_last:
        ph, tau = t
        b0, T, m0, n = PHASES[ph]
        yoff = 1152 * b0 + 144 * tau
        a = acc[t]
        if not rmw[ph]:
            side.append((tile_last[t] + 6, [f"ds_write_b128 v{c['y', T]}, {R(a, 4)} offset:{yoff}"]))
            wdone[ph] = max(wdone.get(ph, 0), tile_last[t] + 6)
        else:
            k = min(range(len(tmp)), key=lambda i: tfree[i])
            rd = max(tile_last[t], wdone[prev[ph]] + 1, tfree[k])
            fin = max(tile_last[t] + 6, rd + 6)
            tfree[k] = fin + 1
            wdone[ph] = max(wdone.get(ph, 0), fin)
            side.append((rd, [f"ds_read_b128 {R(tmp[k], 4)}, v{c['y', T]} offset:{yoff}"]))
            side.append((fin, [f"v_pk_add_f32 {R(a, 2)}, {R(a, 2)}, {R(tmp[k], 2)}",
                               f"v_pk_add_f32 {R(a + 2, 2)}, {R(a + 2, 2)}, {R(tmp[k] + 2, 2)}",
                               f"ds_write_b128 v{c['y', T]}, {R(a, 4)} offset:{yoff}"]))
    side.sort(key=lambda s: s[0])
    started = set()
    for n, op in enumerate(seq):
        budget = 2
        while todo and pool[todo[0][0]] and (first[todo[0]] <= n or (first[todo[0]] <= n + look and budget > 0)):
            load(todo.pop(0))
            budget -= 1
        assert akey(op) in loc and bkey(op) in loc, (n, op)
        while side and side[0][0] <= n:
            for ins in side.pop(0)[1]:
                e(ins)
        t = op[:2]
        cin = R(acc[t], 4) if t in started else "0"
        started.add(t)
        e(f"v_mfma_f32_16x16x32_bf16 {R(acc[t], 4)}, {R(loc[akey(op)], 4)}, {R(loc[bkey(op)], 4)}, {cin}")
        for k in (akey(op), bkey(op)):
            if last[k] == n:
                pool[k[0]].append(loc[k])
    for _, acts in side:
        for ins in acts:
            e(ins)
    for x in allp + tmp + list(acc.values()):
        rg.release(x, 4)
    return len(seq)


def scalars(e):
    for src, dst in ((S_DSV, S_DS), (S_DBV, S_DB)):
        e(f"s_lshl_b32 s{dst}, s{src}, 16")
        e(f"s_and_b32 s{dst + 1}, s{src}, s{S_MASK}")


def epi_addr(e, rg, sc):
    ep = {}
    ep["g"] = rg.alloc(2)
    a = rg.alloc()
    e(f"v_lshlrev_b32 v{a}, 3, v0")
    e(f"v_add_u32 v{a}, {WS_G}, v{a}")
    e(f"global_load_dwordx2 {R(ep['g'], 2)}, v{a}, {sp(S_WS)}{sc}")
    ep["y"], ep["x"], ep["o"] = rg.alloc(), rg.alloc(), rg.alloc()
    e(f"v_lshrrev_b32 v{a}, 3, v0")
    e(f"v_add_u32 v{a}, v0, v{a}")
    e(f"v_lshlrev_b32 v{a}, 4, v{a}")
    e(f"v_add_u32 v{ep['y']}, {LDS_Y}, v{a}")
    e(f"v_lshlrev_b32 v{a}, 3, v0")
    e(f"v_sub_u32 v{ep['x']}, {LDS_B + 4088}, v{a}")
    e(f"s_lshl_b32 s{S_T0}, s{S_D0}, 1")
    e(f"v_mul_u32_u24 v{a}, {4 * ROWB}, v0")
    e(f"v_add_u32 v{ep['o']}, s{S_T0}, v{a}")
    rg.release(a)
    return ep


def epilogue(e, rg, ep, opt):
    y = [rg.alloc(4) for _ in range(4)]
    xr = [rg.alloc(2) for _ in range(4)]
    for i in range(4):
        e(f"ds_read_b128 {R(y[i], 4)}, v{ep['y']} offset:{9216 * i}")
        e(f"ds_read_b64 {R(xr[i], 2)}, v{ep['x']} offset:{5120 * i}")
    gf, g1 = rg.alloc(4), rg.alloc(4)
    for h in (0, 1):
        e(f"v_lshlrev_b32 v{gf + 2 * h}, 16, v{ep['g'] + h}")
        e(f"v_and_b32 v{gf + 2 * h + 1}, s{S_MASK}, v{ep['g'] + h}")
    for k in range(4):
        e(f"v_sub_f32 v{g1 + k}, 1.0, v{gf + k}")
    for h in (0, 2):
        e(f"v_cvt_pk_bf16_f32 v{g1 + h + 1}, v{g1 + h}, v{g1 + h + 1}")
        e(f"v_lshlrev_b32 v{g1 + h}, 16, v{g1 + h + 1}")
        e(f"v_and_b32 v{g1 + h + 1}, s{S_MASK}, v{g1 + h + 1}")
    xf = [rg.alloc(4) for _ in range(4)]
    for i in range(4):
        for h in (0, 1):
            e(f"v_lshlrev_b32 v{xf[i] + 3 - 2 * h}, 16, v{xr[i] + h}")
            e(f"v_and_b32 v{xf[i] + 2 - 2 * h}, s{S_MASK}, v{xr[i] + h}")

    def rnd(regs):
        if not opt.get("mimic"):
            return
        for r in regs:
            e(f"v_cvt_pk_bf16_f32 v{r + 1}, v{r}, v{r + 1}")
        for r in regs:
            e(f"v_lshlrev_b32 v{r}, 16, v{r + 1}")
            e(f"v_and_b32 v{r + 1}, s{S_MASK}, v{r + 1}")

    halves = [(ch, h) for ch in (0, 1) for h in (0, 2)]
    sel = lambda ch: f"op_sel:[0,{ch},0] op_sel_hi:[1,{ch},1]"
    if opt.get("mimic"):
        rnd([y[i] + h for i in range(4) for h in (0, 2)])
        t = [rg.alloc(4) for _ in range(4)]
        for i in range(4):
            for h in (0, 2):
                s = S_DS if i < 2 else S_DB
                e(f"v_pk_mul_f32 {R(t[i] + h, 2)}, {R(xf[i] + h, 2)}, {sp(s)} op_sel:[0,{i & 1}] op_sel_hi:[1,{i & 1}]")
        rnd([t[i] + h for i in range(4) for h in (0, 2)])
        for i in range(4):
            for h in (0, 2):
                e(f"v_pk_add_f32 {R(y[i] + h, 2)}, {R(y[i] + h, 2)}, {R(t[i] + h, 2)}")
        rnd([y[i] + h for i in range(4) for h in (0, 2)])
        for x in t:
            rg.release(x, 4)
    else:
        for i in range(4):
            for h in (0, 2):
                s = S_DS if i < 2 else S_DB
                e(f"v_pk_fma_f32 {R(y[i] + h, 2)}, {R(xf[i] + h, 2)}, {sp(s)}, {R(y[i] + h, 2)} {sel(i & 1)}")
    for ch, h in halves:
        e(f"v_pk_mul_f32 {R(y[2 + ch] + h, 2)}, {R(y[2 + ch] + h, 2)}, {R(xf[ch] + h, 2)}")
    rnd([y[2 + ch] + h for ch, h in halves])
    for ch, h in halves:
        e(f"v_pk_mul_f32 {R(y[2 + ch] + h, 2)}, {R(y[2 + ch] + h, 2)}, {R(g1 + h, 2)}")
    if opt.get("mimic"):
        for ch, h in halves:
            e(f"v_pk_mul_f32 {R(y[ch] + h, 2)}, {R(y[ch] + h, 2)}, {R(gf + h, 2)}")
        rnd([y[i] + h for i in range(4) for h in (0, 2)])
        for ch, h in halves:
            e(f"v_pk_add_f32 {R(y[ch] + h, 2)}, {R(y[ch] + h, 2)}, {R(y[2 + ch] + h, 2)}")
    else:
        for ch, h in halves:
            e(f"v_pk_fma_f32 {R(y[ch] + h, 2)}, {R(y[ch] + h, 2)}, {R(gf + h, 2)}, {R(y[2 + ch] + h, 2)}")
    for k in range(4):
        e(f"v_cvt_pk_bf16_f32 v{gf + k}, v{y[0] + k}, v{y[1] + k}")
        e(f"global_store_dword v{ep['o']}, v{gf + k}, {sp(S_OUT)} offset:{ROWB * k}")


def header(name):
    return f".globl {name}\n.p2align 8\n.type {name},@function\n{name}:"


def descriptor(name, vgpr):
    acc = (vgpr + 3) // 4 * 4
    return f""".amdhsa_kernel {name}
  .amdhsa_next_free_vgpr {vgpr}
  .amdhsa_next_free_sgpr 96
  .amdhsa_accum_offset {acc}
  .amdhsa_group_segment_fixed_size 0
  .amdhsa_kernarg_size 152
  .amdhsa_user_sgpr_count 2
  .amdhsa_user_sgpr_kernarg_segment_ptr 1
  .amdhsa_system_sgpr_workgroup_id_x 1
  .amdhsa_float_denorm_mode_32 3
.end_amdhsa_kernel"""


def kernel_prep(opt):
    e, rg = Emitter(), Regs(1, 256)
    e.raw(header("prep_kernel"))
    lane = prologue(e, rg, "P_exit")
    e(f"s_cmp_eq_u32 s{S_GRP}, 7")
    e("s_cbranch_scc1 P_gate")
    st = e.snapshot()
    import copy
    rg2 = copy.deepcopy(rg)
    t = tile_issue(e, rg)
    tile_weights(e, rg, t)
    tile_compute(e, rg, t, opt)
    e("s_waitcnt lgkmcnt(0)")
    e("s_barrier")
    tile_store(e, rg, t, "")
    e("s_endpgm")
    e.label("P_gate")
    e.restore(st)
    gate_path(e, rg2, lane, "")
    e.label("P_exit")
    e("s_endpgm")
    return e, max(rg.peak, rg2.peak)


def kernel_conv(opt):
    e, rg = Emitter(), Regs(1, 256)
    e.raw(header("conv_kernel"))
    lane = prologue(e, rg, "C_exit")
    e(f"s_cmp_eq_u32 s{S_GRP}, 7")
    e("s_cbranch_scc1 C_exit")
    p = param_issue(e, rg, lane)
    sk = ssmk_issue(e, rg)
    x16 = sk["x16"]
    sa = stage_addr(e, rg, x16)
    stage_issue(e, rg, sa, "")
    ep = epi_addr(e, rg, "")
    m = misc_addr(e, rg, lane, x16)
    zero_pads(e, rg)
    p["cst"] = rg.alloc(2)
    e(f"v_mov_b32 v{p['cst']}, 0x43000000")
    kgen(e, rg, p, m)
    rg.release(p["cst"], 2)
    write_copies(e, rg, sk["D"], m["cw"], x16, 2 * KREG)
    rg.release(sk["D"], 8)
    stage_write(e, rg, sa)
    e("s_waitcnt lgkmcnt(0)")
    e("s_barrier")
    kreduce(e, rg, m, x16)
    c = conv_addr(e, rg, lane)
    scalars(e)
    e("s_waitcnt lgkmcnt(0)")
    e("s_barrier")
    kgather(e, rg, m, x16)
    e("s_waitcnt lgkmcnt(0)")
    e("s_barrier")
    if opt.get("dump"):
        dump_lds(e, rg)
    e(f"s_cmp_ge_u32 s{S_WAVE}, 4")
    e("s_cbranch_scc1 C_join")
    n = conv(e, rg, c)
    e("s_waitcnt lgkmcnt(0)")
    e.label("C_join")
    e.settle()
    e("s_barrier")
    epilogue(e, rg, ep, opt)
    e.label("C_exit")
    e("s_endpgm")
    return e, rg.peak


def dump_lds(e, rg):
    e(f"s_cmp_lg_u32 s2, 9")
    e("s_cbranch_scc1 C_nodump")
    a, b, q = rg.alloc(), rg.alloc(), rg.alloc(4)
    e(f"v_lshlrev_b32 v{a}, 4, v0")
    e(f"v_add_u32 v{b}, {WS_DBG}, v{a}")
    for k in range((LDS_END + 8191) // 8192):
        e(f"ds_read_b128 {R(q, 4)}, v{a}")
        e(f"global_store_dwordx4 v{b}, {R(q, 4)}, {sp(S_WS)}")
        e("s_nop 1")
        e(f"v_add_u32 v{a}, 8192, v{a}")
        e(f"v_add_u32 v{b}, 8192, v{b}")
    e("s_waitcnt vmcnt(0) lgkmcnt(0)")
    e.label("C_nodump")
    e.settle()
    e("s_barrier")
    rg.release(a)
    rg.release(b)
    rg.release(q, 4)


def top_comment():
    ref = open(f"cdna_kernels/{NAME}.s.ref").read().split("\n")
    return "\n".join(l for l in ref if l.startswith(";") and "@launch" not in l and "Override launch" not in l and "grid=ceil" not in l)


def build(opt):
    k1, v1 = kernel_prep(opt)
    k2, v2 = kernel_conv(opt)
    lds2 = (LDS_END + 1279) // 1280 * 1280
    out = [top_comment(),
           f"; @launch kernel=prep_kernel grid=(256,1,1) block=(512,1,1) lds={LDS_TR + 16384}",
           f"; @launch kernel=conv_kernel grid=(256,1,1) block=(512,1,1) lds={lds2}",
           '.amdgcn_target "amdgcn-amd-amdhsa--gfx950"', ".text",
           k1.text(), k2.text(), '.section .rodata,"a"', ".p2align 6",
           descriptor("prep_kernel", v1), ".p2align 6", descriptor("conv_kernel", v2), ""]
    sys.stderr.write(f"vgprs {v1} {v2}; counts {k1.count} {k2.count}; lds {LDS_END}\n")
    return "\n".join(out)


if __name__ == "__main__":
    opt = {}
    path = f"cdna_kernels/{NAME}.s"
    for a in sys.argv[1:]:
        if a.startswith("-o"):
            path = a[2:]
        else:
            k, _, v = a.partition("=")
            opt[k] = int(v) if v else 1
    open(path, "w").write(build(opt))
```
